```python
import torch

def _softmax(x, axis=-1):
    return torch.softmax(x, dim=axis)

def _gelu(x):
    return torch.nn.functional.gelu(x, approximate='tanh')

def _silu(x):
    return torch.nn.functional.silu(x)

def _sigmoid(x):
    return torch.sigmoid(x)

def _layernorm(x, axis=-1, eps=1e-05):
    m = x.mean(dim=axis, keepdim=True)
    v = x.var(dim=axis, keepdim=True, unbiased=False)
    return (x - m) / torch.sqrt(v + eps)

def _scatter_add(tgt, idx, src, axis=0):
    return tgt.clone().index_add_(axis, idx, src)

def _segment_sum(src, seg, n):
    out = torch.zeros((n,) + src.shape[1:], dtype=src.dtype)
    return out.index_add_(0, seg, src)

def _pad(x, pw):
    flat = tuple((v for pair in reversed(pw) for v in pair))
    return torch.nn.functional.pad(x, flat)
kernel_name = 'standalone__conformer_family_branchformer__speech'

def setup_inputs():

    _w = lambda a: (lambda t: t.to(torch.bfloat16) if t.is_floating_point() else t)(torch.as_tensor(a))
    B, T, D, K = (2, 4000, 144, 5)
    s = float(D) ** (-0.5)
    return {'x': _w((lambda *s: torch.randn(*s, dtype=torch.bfloat16) * 0.05)(B, T, D)), 'w_q': _w((lambda *s: torch.randn(*s, dtype=torch.bfloat16) * 1.6)(D, D) * s), 'w_k': _w((lambda *s: torch.randn(*s, dtype=torch.bfloat16) * 1.6)(D, D) * s), 'w_v': _w((lambda *s: torch.randn(*s, dtype=torch.bfloat16) * 0.4)(D, D) * s), 'w_ao': _w((lambda *s: torch.randn(*s, dtype=torch.bfloat16) * 0.4)(D, D) * s), 'w_up': _w((lambda *s: torch.randn(*s, dtype=torch.bfloat16) * 0.8)(D, 2 * D) * s), 'dw': _w((lambda *s: torch.randn(*s, dtype=torch.bfloat16) * 0.8)(K, D) * (1.0 / K)), 'w_dn': _w((lambda *s: torch.randn(*s, dtype=torch.bfloat16) * 0.4)(D, D) * s), 'w_merge': _w((lambda *s: torch.randn(*s, dtype=torch.bfloat16) * 0.4)(2 * D, D) * s)}

def reference(x, w_q, w_k, w_v, w_ao, w_up, dw, w_dn, w_merge):
    B, T, D = x.shape
    K = dw.shape[0]
    xa = _layernorm(x, axis=-1)
    q = torch.einsum('btd,de->bte', xa, w_q)
    k = torch.einsum('btd,de->bte', xa, w_k)
    v = torch.einsum('btd,de->bte', xa, w_v)
    logits = torch.einsum('btd,bsd->bts', q, k) * float(D) ** (-0.5)
    attn = _softmax(logits, axis=-1)
    ya = torch.einsum('bts,bsd->btd', attn, v)
    ya = torch.einsum('btd,de->bte', ya, w_ao)
    xc = _layernorm(x, axis=-1)
    h = _gelu(torch.einsum('btd,de->bte', xc, w_up))
    u = h[..., :D].clone()
    g = _layernorm(h[..., D:], axis=-1)
    pad = K // 2
    gp = _pad(g, ((0, 0), (pad, pad), (0, 0)))
    conv = torch.zeros_like(g)
    for i in range(K):
        conv = conv + gp[:, i:i + T, :] * dw[i][None, None, :]
    yc = torch.einsum('btd,de->bte', u * conv, w_dn)
    merged = torch.concatenate([ya, yc], axis=-1)
    out = torch.einsum('btf,fd->btd', merged, w_merge)
    return x + out
```

```python
B, T, D = 2, 4000, 144
NT = 125
TILE = 9216
XA_OFF = 0
QP_OFF = 2304000
Z_OFF  = 4608000
WF_OFF = 6912000
U_OFF = QP_OFF
G_OFF = Z_OFF
WQ_OFF = WF_OFF + 5*18*1024
WS_USED = WQ_OFF + 5*9*1024

class Emit:
    def __init__(self):
        self.l = []
    def __call__(self, s):
        for x in s.split('\n'):
            x = x.strip()
            if x:
                self.l.append(('' if x.endswith(':') else '    ') + x)
    def text(self):
        return '\n'.join(self.l) + '\n'

def vr(a, n=1):
    return f'v{a}' if n == 1 else f'v[{a}:{a+n-1}]'
def sr(a, n=1):
    return f's{a}' if n == 1 else f's[{a}:{a+n-1}]'

def kdesc(name, vgpr, sgpr, accum=None):
    if accum is None:
        accum = (vgpr + 3) // 4 * 4
    return f'''.p2align 6
.amdhsa_kernel {name}
  .amdhsa_next_free_vgpr {vgpr}
  .amdhsa_next_free_sgpr {sgpr}
  .amdhsa_accum_offset {accum}
  .amdhsa_group_segment_fixed_size 0
  .amdhsa_kernarg_size 96
  .amdhsa_user_sgpr_count 2
  .amdhsa_user_sgpr_kernarg_segment_ptr 1
  .amdhsa_system_sgpr_workgroup_id_x 1
.end_amdhsa_kernel
'''
def khead(name):
    return f'''.globl {name}
.p2align 8
.type {name},@function
{name}:
'''

def ar(a, n=1):
    return f'a{a}' if n == 1 else f'a[{a}:{a+n-1}]'
def srd(e, s, base, size):
    e(f's_mov_b32 s{s}, s{base}')
    e(f's_and_b32 s{s+1}, s{base+1}, 0xffff')
    e(f's_mov_b32 s{s+2}, {size}')
    e(f's_mov_b32 s{s+3}, 0x00020000')
import struct
def f2u(x):
    return '0x%08x' % struct.unpack('<I', struct.pack('<f', x))[0]
MF = 'v_mfma_f32_32x32x16_bf16'
```

```python
from common import *
import math
WUP = 82944
STAT = WUP
K1_LDS = STAT + 2048
K0 = -2*math.sqrt(2/math.pi)*math.log2(math.e)
K1c = K0*0.044715

def gelu_scalar(r, t):
    return [f'v_mul_f32 v{t}, v{r}, v{r}',
            f'v_fma_f32 v{t}, v{t}, s40, v5',
            f'v_mul_f32 v{t}, v{t}, v{r}',
            f'v_exp_f32 v{t}, v{t}',
            None,
            f'v_add_f32 v{t}, 1.0, v{t}',
            f'v_rcp_f32 v{t}, v{t}',
            None,
            f'v_mul_f32 v{r}, v{r}, v{t}']

def gelu_group(regs, temps):
    seqs = [[x for x in gelu_scalar(r, t) if x] for r, t in zip(regs, temps)]
    out = []
    for st in range(7):
        for s in seqs:
            out.append(s[st])
    return out

def gelu_packed(e, r0, n, t0):
    P = range(0, n, 2)
    for i in P: e(f'v_pk_mul_f32 {vr(t0+i,2)}, {vr(r0+i,2)}, {vr(r0+i,2)}')
    for i in P: e(f'v_pk_fma_f32 {vr(t0+i,2)}, {vr(t0+i,2)}, v[4:5], v[4:5] op_sel:[0,0,1] op_sel_hi:[1,0,1]')
    for i in P: e(f'v_pk_mul_f32 {vr(t0+i,2)}, {vr(t0+i,2)}, {vr(r0+i,2)}')
    for i in range(n): e(f'v_exp_f32 v{t0+i}, v{t0+i}')
    for i in P: e(f'v_pk_add_f32 {vr(t0+i,2)}, {vr(t0+i,2)}, v[6:7]')
    for i in range(n): e(f'v_rcp_f32 v{t0+i}, v{t0+i}')
    e('s_nop 0')
    for i in P: e(f'v_pk_mul_f32 {vr(r0+i,2)}, {vr(r0+i,2)}, {vr(t0+i,2)}')

def main_role(e):
    sX, sWU, sWS = 12, 16, 20
    sW, sTO = 28, 29
    vXR, vD, vXA, vA = 16, 52, 16, 124
    vG, vQ4, vU = 52, 68, 84
    vTm = 100
    e(f'''s_load_dwordx2 s[4:5], s[0:1], 0
    s_load_dwordx2 s[6:7], s[0:1], 40
    s_load_dwordx2 s[8:9], s[0:1], 88
    s_mul_i32 s{sTO}, s2, {TILE}
    v_and_b32 v1, 31, v0
    v_lshrrev_b32 v2, 5, v0
    v_mul_u32_u24 v3, 288, v1
    v_lshl_add_u32 v3, v2, 4, v3
    v_lshlrev_b32 v8, 4, v0
    s_mul_i32 s30, s{sW}, {20*1024}
    s_waitcnt lgkmcnt(0)''')
    srd(e, sX, 4, B*T*D*2)
    srd(e, sWU, 6, WUP)
    for j in range(9):
        e(f'buffer_load_dwordx4 {vr(vXR+4*j,4)}, v3, {sr(sX,4)}, s{sTO} offen offset:{32*j}')
    for j in range(21):
        if j % 4 == 0:
            if j: e(f's_add_u32 s30, s30, 4096')
            e(f's_mov_b32 m0, s30')
            e('s_nop 0')
        e(f'buffer_load_dwordx4 v8, {sr(sWU,4)}, s30 offen offset:{(j%4)*1024} lds')
    srd(e, sWS, 8, WS_USED)
    e(f'''s_mov_b32 s40, {f2u(K1c)}
    v_mov_b32 v4, s40
    v_mov_b32 v5, {f2u(K0)}
    v_mov_b32 v6, 1.0
    v_mov_b32 v7, 1.0
    s_mov_b32 s41, 0x3f803f80
    s_mov_b32 s42, 0x00003f80
    s_mov_b32 s43, 0x3f800000
    s_and_b32 s31, s{sW}, 1
    s_lshl_b32 s32, s31, 3
    v_lshlrev_b32 v9, 2, v2
    v_xor_b32 v9, v9, v1
    v_xor_b32 v9, s32, v9
    v_lshlrev_b32 v9, 4, v9
    v_lshl_add_u32 v9, v2, 9, v9
    v_bfe_u32 v10, v0, 2, 2
    v_lshl_add_u32 v10, v2, 3, v10
    v_mul_u32_u24 v10, 576, v10
    v_bfe_u32 v11, v0, 4, 1
    v_lshl_add_u32 v10, v11, 5, v10
    v_and_b32 v11, 1, v0
    v_lshl_add_u32 v10, v11, 4, v10
    v_bfe_u32 v11, v0, 1, 1
    v_lshl_add_u32 v10, v11, 3, v10
    s_lshr_b32 s33, s{sW}, 1
    s_lshl_b32 s33, s33, 5
    s_add_u32 s33, s33, s32
    s_add_u32 s33, s33, 256
    v_add_u32 v12, s33, v10
    v_add_u32 v13, {112*576}, v12
    s_lshl_b32 s33, s{sW}, 6
    v_add_u32 v10, s33, v10
    v_add_u32 v11, {112*576}, v10
    v_mov_b32 v14, 0
    v_mov_b32 v15, 0''')
    for j in range(9):
        e(f's_waitcnt vmcnt({21+8-j})')
        for k in range(4):
            e(f'v_dot2_f32_bf16 v{14+(k&1)}, v{vXR+4*j+k}, s41, v{14+(k&1)}')
    e(f'''s_nop 2
    v_add_f32 v14, v14, v15
    v_mov_b32 v15, v14
    s_nop 1
    v_permlane32_swap_b32 v14, v15
    s_nop 1
    v_add_f32 v14, v14, v15
    v_mul_f32 v14, {f2u(-1/144)}, v14''')
    for i in range(36):
        e(f'v_dot2_f32_bf16 v{vD+2*i}, v{vXR+i}, s42, v14')
        e(f'v_dot2_f32_bf16 v{vD+2*i+1}, v{vXR+i}, s43, v14')
    e('s_nop 2')
    e(f'v_pk_mul_f32 v[124:125], {vr(vD,2)}, {vr(vD,2)}')
    e(f'v_pk_mul_f32 v[126:127], {vr(vD+2,2)}, {vr(vD+2,2)}')
    for i in range(2, 36):
        a = 124 + 2*(i & 1)
        e(f'v_pk_fma_f32 {vr(a,2)}, {vr(vD+2*i,2)}, {vr(vD+2*i,2)}, {vr(a,2)}')
    e(f'''v_pk_add_f32 v[124:125], v[124:125], v[126:127]
    s_nop 0
    v_add_f32 v14, v124, v125
    v_mov_b32 v15, v14
    s_nop 1
    v_permlane32_swap_b32 v14, v15
    s_nop 1
    v_add_f32 v14, v14, v15
    v_mov_b32 v15, {f2u(1e-5)}
    v_fmac_f32 v15, {f2u(1/144)}, v14
    v_rsq_f32 v14, v15
    s_nop 0''')
    for i in range(36):
        e(f'v_pk_mul_f32 {vr(vD+2*i,2)}, {vr(vD+2*i,2)}, v[14:15] op_sel_hi:[1,0]')
    for i in range(36):
        e(f'v_cvt_pk_bf16_f32 v{vXA+i}, v{vD+2*i}, v{vD+2*i+1}')
    e('s_waitcnt vmcnt(0)')
    e('s_barrier')
    def trd(tile, j, ep):
        base = (12 if tile == 1 else 10) + (1 if j >= 7 else 0)
        off = (16*j + 4*ep - (112 if j >= 7 else 0))*576 + (320 if tile == 0 else 0)
        return f'ds_read_b64_tr_b16 {vr(vA+36*tile+4*j+2*ep,2)}, v{base} offset:{off}'
    reads = [trd(t, j, ep) for t in range(3) for j in range(9) for ep in range(2)]
    for x in reads[:14]: e(x)
    e(f's_add_u32 s34, s{sTO}, 4096')
    for w in range(4):
        if w < 3:
            e(f's_cmp_eq_u32 s{sW}, {w}')
            e(f's_cbranch_scc0 L1_st{w+1}')
        e(f'buffer_store_dwordx4 {vr(vXA+4*w,4)}, v9, {sr(sWS,4)}, s{sTO} offen offset:{1024*w}')
        e(f'buffer_store_dwordx4 {vr(vXA+4*w+16,4)}, v9, {sr(sWS,4)}, s34 offen offset:{1024*w}')
        if w == 0:
            e(f's_add_u32 s34, s{sTO}, 8192')
            e(f'buffer_store_dwordx4 {vr(vXA+32,4)}, v9, {sr(sWS,4)}, s34 offen')
        if w < 3:
            e('s_branch L1_std')
            e(f'L1_st{w+1}:')
    e('L1_std:')
    acc = [vG, vQ4, vU]
    nr = 14
    fill = []
    for g in range(4):
        fill += gelu_group([vG+4*g+k for k in range(4)], [vTm+4*g+k for k in range(4)])
    fi = 0
    for m in range(27):
        t, j = divmod(m, 9)
        e(f's_waitcnt lgkmcnt({nr - 2*(m+1)})')
        e(f'{MF} {vr(acc[t],16)}, {vr(vA+36*t+4*j,4)}, {vr(vXA+4*j,4)}, {"0" if j == 0 else vr(acc[t],16)}')
        for _ in range(2):
            if nr < 54:
                e(reads[nr]); nr += 1
        if m >= 11:
            n = 7
            for x in fill[fi:fi+n]: e(x)
            fi += n
    for x in fill[fi:]: e(x)
    for x in gelu_group([vQ4+k for k in range(4)], [vTm+k for k in range(4)]): e(x)
    e(f'''s_cmp_ge_u32 s{sW}, 2
    s_cselect_b32 s35, 1.0, 0
    v_pk_add_f32 v[100:101], {vr(vQ4,2)}, {vr(vQ4+2,2)}
    v_pk_mul_f32 v[102:103], {vr(vQ4,2)}, {vr(vQ4,2)}
    v_pk_fma_f32 v[102:103], {vr(vQ4+2,2)}, {vr(vQ4+2,2)}, v[102:103]
    v_mul_f32 v100, s35, v100
    v_mul_f32 v101, s35, v101
    v_mul_f32 v102, s35, v102
    v_mul_f32 v103, s35, v103''')
    for i in range(0, 16, 2):
        e(f'v_pk_add_f32 v[100:101], v[100:101], {vr(vG+i,2)}')
        e(f'v_pk_fma_f32 v[102:103], {vr(vG+i,2)}, {vr(vG+i,2)}, v[102:103]')
    e(f'''v_lshlrev_b32 v14, 6, v1
    v_add_u32 v14, {STAT}, v14
    s_lshl_b32 s36, s{sW}, 4
    v_lshl_add_u32 v15, v2, 3, s36
    v_add_u32 v15, v15, v14
    v_add_f32 v100, v100, v101
    v_add_f32 v101, v102, v103
    ds_write_b64 v15, v[100:101]''')
    gelu_packed(e, vU, 16, 104)
    e(f'''s_lshl_b32 s36, s{sW}, 11
    s_add_u32 s36, s36, s{sTO}
    s_add_u32 s36, s36, {U_OFF}''')
    for k in range(8):
        e(f'v_cvt_pk_bf16_f32 v{vU+k}, v{vU+2*k}, v{vU+2*k+1}')
    e('s_waitcnt lgkmcnt(0)')
    e('s_barrier')
    for k in range(4):
        e(f'ds_read_b128 {vr(104+4*k,4)}, v14 offset:{16*k}')
    e(f'buffer_store_dwordx4 {vr(vU,4)}, v8, {sr(sWS,4)}, s36 offen')
    e(f'buffer_store_dwordx4 {vr(vU+4,4)}, v8, {sr(sWS,4)}, s36 offen offset:1024')
    e(f'''s_cmp_ge_u32 s2, {NT}
    s_cselect_b32 s37, {18*64000 - NT*512}, 0
    s_lshl_b32 s38, s2, 9
    s_add_u32 s37, s37, s38
    s_add_u32 s37, s37, {G_OFF}
    s_mul_i32 s38, s{sW}, {4*64000}
    s_add_u32 s38, s38, s37
    s_add_u32 s38, s38, {2*64000}
    s_add_u32 s39, s38, {2*64000}
    v_mul_u32_u24 v3, 64000, v2
    v_lshl_add_u32 v3, v1, 4, v3
    s_waitcnt lgkmcnt(0)''')
    for st in (2, 4, 8):
        for k in range(0, 16, 2*st):
            e(f'v_pk_add_f32 {vr(104+k,2)}, {vr(104+k,2)}, {vr(104+k+st,2)}')
    e(f'''s_nop 0
    v_mul_f32 v104, {f2u(1/144)}, v104
    v_mul_f32 v106, v104, v104
    v_fma_f32 v105, v105, s44, -v106
    v_max_f32 v105, 0, v105
    v_add_f32 v105, {f2u(1e-5)}, v105
    v_rsq_f32 v106, v105
    s_nop 0
    v_mul_f32 v107, v104, v106''')
    for i in range(0, 16, 2):
        e(f'v_pk_fma_f32 {vr(vG+i,2)}, {vr(vG+i,2)}, v[106:107], v[106:107] op_sel:[0,0,1] op_sel_hi:[1,0,1] neg_lo:[0,0,1] neg_hi:[0,0,1]')
    e('s_nop 0')
    for k in range(8):
        e(f'v_cvt_pk_f16_f32 v{vG+k}, v{vG+2*k}, v{vG+2*k+1}')
    e(f'buffer_store_dwordx4 {vr(vG,4)}, v3, {sr(sWS,4)}, s38 offen')
    e(f'buffer_store_dwordx4 {vr(vG+4,4)}, v3, {sr(sWS,4)}, s39 offen')
    e(f'''s_cmp_ge_u32 s{sW}, 2
    s_cbranch_scc1 L1_qg
    v_cvt_pk_bf16_f32 v{vQ4}, v{vQ4}, v{vQ4+1}
    v_cvt_pk_bf16_f32 v{vQ4+1}, v{vQ4+2}, v{vQ4+3}
    s_add_u32 s36, s{sTO}, {U_OFF+8192}
    s_add_u32 s36, s36, s32
    buffer_store_dwordx2 {vr(vQ4,2)}, v8, {sr(sWS,4)}, s36 offen
    s_endpgm
    L1_qg:''')
    for i in range(0, 4, 2):
        e(f'v_pk_fma_f32 {vr(vQ4+i,2)}, {vr(vQ4+i,2)}, v[106:107], v[106:107] op_sel:[0,0,1] op_sel_hi:[1,0,1] neg_lo:[0,0,1] neg_hi:[0,0,1]')
    e(f'''s_add_u32 s37, s37, s32
    v_cvt_pk_f16_f32 v{vQ4}, v{vQ4}, v{vQ4+1}
    v_cvt_pk_f16_f32 v{vQ4+1}, v{vQ4+2}, v{vQ4+3}
    buffer_store_dwordx2 {vr(vQ4,2)}, v3, {sr(sWS,4)}, s37 offen
    s_endpgm''')

def weight_role(e):
    sW = 28
    sA1, sB0, sA2, sWS = 12, 16, 20, 24
    aA1, aB0 = 0, 180
    vB, vB2, vAcc, vA2, vI = 16, 56, 96, 128, 236
    e(f'''L1_wt:
    s_load_dwordx4 s[44:47], s[0:1], 8
    s_load_dwordx4 s[48:51], s[0:1], 24
    s_load_dwordx4 s[52:55], s[0:1], 56
    s_load_dwordx2 s[8:9], s[0:1], 88
    s_sub_u32 s29, s2, 250
    v_and_b32 v1, 31, v0
    v_lshrrev_b32 v2, 5, v0
    v_and_b32 v3, 0x13, v1
    v_bfe_u32 v4, v1, 2, 1
    v_lshl_add_u32 v3, v4, 3, v3
    v_bfe_u32 v4, v1, 3, 1
    v_lshl_add_u32 v3, v4, 2, v3
    v_mul_u32_u24 v3, 288, v3
    v_lshl_add_u32 v3, v2, 4, v3
    v_mul_u32_u24 v4, 288, v1
    v_lshl_add_u32 v4, v2, 4, v4
    v_lshlrev_b32 v8, 4, v0
    s_waitcnt lgkmcnt(0)
    s_cmp_eq_u32 s{sW}, 1
    s_cselect_b32 s4, s52, s50
    s_cselect_b32 s5, s53, s51
    s_cselect_b32 s30, {144*288}, 0
    s_cmp_eq_u32 s{sW}, 0
    s_cselect_b32 s4, s44, s4
    s_cselect_b32 s5, s45, s5''')
    srd(e, sA1, 4, 144*288)
    srd(e, sA2, 48, 144*288)
    srd(e, sWS, 8, WS_USED)
    e(f'''s_cmp_eq_u32 s{sW}, 0
    s_cbranch_scc0 L1_w_m''')
    srd(e, sB0, 46, 144*288)
    e(f's_mul_i32 s30, s29, {32*288}')
    for j in range(9):
        e(f'buffer_load_dwordx4 {vr(vB+4*j,4)}, v3, {sr(sB0,4)}, s30 offen offset:{32*j}')
    e('s_branch L1_w_a1')
    e('L1_w_m:')
    srd(e, sB0, 54, 288*288)
    e(f's_lshl_b32 s31, s29, 6')
    e(f's_add_u32 s30, s30, s31')
    for jt in range(5):
        if jt: e(f's_add_u32 s30, s30, {32*288}')
        for k in range(2):
            e(f'buffer_load_dwordx4 {ar(aB0+8*jt+4*k,4)}, v3, {sr(sB0,4)}, s30 offen offset:{32*k}')
    e('L1_w_a1:')
    for dt in range(5):
        e(f's_mov_b32 s30, {dt*32*288}')
        for j in range(9):
            e(f'buffer_load_dwordx4 {ar(aA1+36*dt+4*j,4)}, v3, {sr(sA1,4)}, s30 offen offset:{32*j}')
    e(f'''s_mov_b32 s40, 1.0
    s_cmp_eq_u32 s{sW}, 0
    s_cselect_b32 s40, {f2u(144**-0.5*math.log2(math.e))}, s40
    s_cbranch_scc1 L1_w_g1''')
    e(f'''v_lshlrev_b32 v5, 3, v2
    v_sub_u32 v5, v1, v5
    v_and_b32 v6, 1, v5
    v_lshlrev_b32 v6, 4, v6
    v_lshlrev_b32 v6, v6, 0x3f80
    v_ashrrev_i32 v5, 1, v5''' .replace('v_lshlrev_b32 v6, v6, 0x3f80', 'v_mov_b32 v7, 0x3f80\nv_lshlrev_b32 v6, v6, v7'))
    for k in range(2):
        for m in range(4):
            e(f'v_cmp_eq_u32 vcc, {8*k+m}, v5')
            e('s_nop 1')
            e(f'v_cndmask_b32 v{vI+4*k+m}, 0, v6, vcc')
    e('s_waitcnt vmcnt(45)')
    for jt in range(6):
        a = vAcc + 16*(jt & 1)
        if jt < 5:
            e(f'{MF} {vr(a,16)}, {ar(aB0+8*jt,4)}, {vr(vI,4)}, 0')
            e(f'{MF} {vr(a,16)}, {ar(aB0+8*jt+4,4)}, {vr(vI+4,4)}, {vr(a,16)}')
        else:
            e('s_nop 7'); e('s_nop 7')
        if jt:
            if jt < 5: e('s_nop 7')
            p = vAcc + 16*((jt-1) & 1)
            for k in range(8):
                e(f'v_cvt_pk_bf16_f32 v{vB+8*(jt-1)+k}, v{p+2*k}, v{p+2*k+1}')
    e('L1_w_g1:')
    e(f's_and_b32 s31, s{sW}, 1')
    e(f's_mul_i32 s30, s31, {64*288}')
    e('s_waitcnt vmcnt(36)')
    for dt in range(3):
        if dt: e(f's_add_u32 s30, s30, {32*288}')
        for j in range(9):
            e(f'buffer_load_dwordx4 {vr(vA2+36*dt+4*j,4)}, v4, {sr(sA2,4)}, s30 offen offset:{32*j}')
    for dt in range(6):
        a = vAcc + 16*(dt & 1)
        if dt < 5:
            e(f's_waitcnt vmcnt({27 + 9*(4-dt)})')
            for j in range(9):
                e(f'{MF} {vr(a,16)}, {ar(aA1+36*dt+4*j,4)}, {vr(vB+4*j,4)}, {"0" if j == 0 else vr(a,16)}')
        else:
            e('s_nop 7'); e('s_nop 7')
        if dt:
            p = vAcc + 16*((dt-1) & 1)
            for k in range(16 if dt < 5 else 8):
                e(f'v_mul_f32 v{p+k}, s40, v{p+k}')
            for k in range(8 if dt < 5 else 4):
                e(f'v_cvt_pk_bf16_f32 v{vB2+8*(dt-1)+k}, v{p+2*k}, v{p+2*k+1}')
    e(f'''s_cmp_ge_u32 s{sW}, 2
    s_cbranch_scc1 L1_w_g2
    s_mul_i32 s30, s29, {9*1024}
    s_add_u32 s30, s30, {WQ_OFF}
    s_mul_i32 s32, s29, {18*1024}
    s_add_u32 s32, s32, {WF_OFF + 9*1024}
    s_cmp_eq_u32 s{sW}, 0
    s_cselect_b32 s30, s30, s32''')
    for j in range(9):
        if j % 4 == 0 and j: e('s_add_u32 s30, s30, 4096')
        e(f'buffer_store_dwordx4 {vr(vB2+4*j,4)}, v8, {sr(sWS,4)}, s30 offen offset:{(j%4)*1024}')
    e('s_endpgm')
    e(f'''L1_w_g2:
    s_mul_i32 s30, s29, {18*1024}
    s_lshl_b32 s32, s31, 12
    s_add_u32 s30, s30, s32
    s_add_u32 s30, s30, {WF_OFF}
    s_add_u32 s32, s30, 4096
    s_waitcnt vmcnt(0)''')
    for dt in range(4):
        a = vAcc + 16*(dt & 1)
        if dt < 3:
            for j in range(9):
                e(f'{MF} {vr(a,16)}, {vr(vA2+36*dt+4*j,4)}, {vr(vB2+4*j,4)}, {"0" if j == 0 else vr(a,16)}')
        else:
            e('s_nop 7'); e('s_nop 7')
        if dt:
            p = vAcc + 16*((dt-1) & 1)
            for k in range(8):
                e(f'v_cvt_pk_bf16_f32 v{vB+8*(dt-1)+k}, v{p+2*k}, v{p+2*k+1}')
    for j in range(5):
        e(f'buffer_store_dwordx4 {vr(vB+4*j,4)}, v8, {sr(sWS,4)}, s{30 if j < 4 else 32} offen offset:{(j%4)*1024}')
    e('s_endpgm')

def gen_k1(name):
    e = Emit()
    e(f'''s_cmp_ge_u32 s2, 255
    s_cbranch_scc1 L1_exit
    v_lshrrev_b32 v1, 6, v0
    v_and_b32 v0, 63, v0
    v_readfirstlane_b32 s28, v1
    s_mov_b32 s44, {f2u(1/144)}
    s_cmp_ge_u32 s2, 250
    s_cbranch_scc1 L1_wt''')
    main_role(e)
    weight_role(e)
    e('L1_exit:')
    e('s_endpgm')
    return khead(name) + e.text()
```

```python
import sys, importlib
from common import *
import k1
k2 = importlib.import_module(sys.argv[2] if len(sys.argv) > 2 else 'k3')
ref = open('standalone__conformer_family_branchformer__speech.s.ref').read().split('\n')
head = [l for l in ref if l.startswith(';') and '@launch' not in l][:13]
s = '\n'.join(head) + '\n'
s += f'; @launch kernel=prep_kernel grid=(256,1,1) block=(256,1,1) lds={k1.K1_LDS}\n'
s += f'; @launch kernel=attn_kernel grid=({k2.K2_GRID},1,1) block=({k2.K2_BLOCK},1,1) lds={k2.K2_LDS}\n'
s += '.amdgcn_target "amdgcn-amd-amdhsa--gfx950"\n.text\n'
s += k1.gen_k1('prep_kernel') + k2.gen_k2('attn_kernel')
s += '.section .rodata,"a"\n' + kdesc('prep_kernel', 232, 100 if TS else 64) + kdesc('attn_kernel', k2.K2_VGPR, 100 if TS else 64, k2.K2_ACC)
open(sys.argv[1], 'w').write(s)
```

```python
B, T, D = 2, 4000, 144
NT = 125
TILE = 9216
XA_OFF = 0
QP_OFF = 2304000
Z_OFF  = 4608000
WF_OFF = 6912000
U_OFF = QP_OFF
G_OFF = Z_OFF
WQ_OFF = WF_OFF + 5*18*1024
EX_OFF = WQ_OFF + 5*9*1024
WS_USED = EX_OFF + 252*12288

class Emit:
    def __init__(self):
        self.l = []
    def __call__(self, s):
        for x in s.split('\n'):
            x = x.strip()
            if x:
                self.l.append(('' if x.endswith(':') else '    ') + x)
    def text(self):
        return '\n'.join(self.l) + '\n'

def vr(a, n=1):
    return f'v{a}' if n == 1 else f'v[{a}:{a+n-1}]'
def sr(a, n=1):
    return f's{a}' if n == 1 else f's[{a}:{a+n-1}]'

def kdesc(name, vgpr, sgpr, accum=None):
    if accum is None:
        accum = (vgpr + 3) // 4 * 4
    return f'''.p2align 6
.amdhsa_kernel {name}
  .amdhsa_next_free_vgpr {vgpr}
  .amdhsa_next_free_sgpr {sgpr}
  .amdhsa_accum_offset {accum}
  .amdhsa_group_segment_fixed_size 0
  .amdhsa_kernarg_size 96
  .amdhsa_user_sgpr_count 2
  .amdhsa_user_sgpr_kernarg_segment_ptr 1
  .amdhsa_system_sgpr_workgroup_id_x 1
.end_amdhsa_kernel
'''
def khead(name):
    return f'''.globl {name}
.p2align 8
.type {name},@function
{name}:
'''

def ar(a, n=1):
    return f'a{a}' if n == 1 else f'a[{a}:{a+n-1}]'
def srd(e, s, base, size):
    e(f's_mov_b32 s{s}, s{base}')
    e(f's_and_b32 s{s+1}, s{base+1}, 0xffff')
    e(f's_mov_b32 s{s+2}, {size}')
    e(f's_mov_b32 s{s+3}, 0x00020000')
import struct
def f2u(x):
    return '0x%08x' % struct.unpack('<I', struct.pack('<f', x))[0]
MF = 'v_mfma_f32_32x32x16_bf16'

import os
TS = int(os.environ.get('TS', '0'))
TS_OFF = 12 << 20
if TS: WS_USED = 15 << 20
def stamp(e, i):
    if TS == 3 and i in (4, 5): return
    if TS == 3 and i in (2, 3): e(f's_memtime s[{74+2*i}:{75+2*i}]')
    if TS:
        e(f's_mem{"" if TS == 2 else "real"}time s[{70+2*i}:{71+2*i}]')
        e('s_waitcnt lgkmcnt(0)')
def stamp_flush(e, kern, sWS, sW, last):
    if TS:
        stamp(e, last)
        for i in range(8):
            e(f'v_mov_b32 v{10+i}, s{70+2*i}')
        e(f's_lshl_b32 s68, s2, 3')
        e(f's_add_u32 s68, s68, s{sW}')
        e(f's_lshl_b32 s68, s68, 5')
        e(f's_add_u32 s68, s68, {TS_OFF + kern*(1<<20)}')
        e(f'v_mov_b32 v18, 0')
        e(f'buffer_store_dwordx4 v[10:13], v18, s[{sWS}:{sWS+3}], s68 offen')
        e(f'buffer_store_dwordx4 v[14:17], v18, s[{sWS}:{sWS+3}], s68 offen offset:16')
AB = os.environ.get('AB', '')
```

```python
from common import *
import math
WUP = 82944
STAT = WUP
XT = STAT + 2048
MS = 41984
K1_LDS = 3*MS
K0 = -2*math.sqrt(2/math.pi)*math.log2(math.e)
K1c = K0*0.044715

def gelu_scalar(r, t):
    return [f'v_mul_f32 v{t}, v{r}, v{r}',
            f'v_fma_f32 v{t}, v{t}, s40, v5',
            f'v_mul_f32 v{t}, v{t}, v{r}',
            f'v_exp_f32 v{t}, v{t}',
            None,
            f'v_add_f32 v{t}, 1.0, v{t}',
            f'v_rcp_f32 v{t}, v{t}',
            None,
            f'v_mul_f32 v{r}, v{r}, v{t}']

def gelu_group(regs, temps):
    seqs = [[x for x in gelu_scalar(r, t) if x] for r, t in zip(regs, temps)]
    out = []
    for st in range(7):
        for s in seqs:
            out.append(s[st])
    return out

def gelu_packed(e, r0, n, t0):
    P = range(0, n, 2)
    for i in P: e(f'v_pk_mul_f32 {vr(t0+i,2)}, {vr(r0+i,2)}, {vr(r0+i,2)}')
    for i in P: e(f'v_pk_fma_f32 {vr(t0+i,2)}, {vr(t0+i,2)}, v[4:5], v[4:5] op_sel:[0,0,1] op_sel_hi:[1,0,1]')
    for i in P: e(f'v_pk_mul_f32 {vr(t0+i,2)}, {vr(t0+i,2)}, {vr(r0+i,2)}')
    for i in range(n): e(f'v_exp_f32 v{t0+i}, v{t0+i}')
    for i in P: e(f'v_pk_add_f32 {vr(t0+i,2)}, {vr(t0+i,2)}, v[6:7]')
    for i in range(n): e(f'v_rcp_f32 v{t0+i}, v{t0+i}')
    e('s_nop 0')
    for i in P: e(f'v_pk_mul_f32 {vr(r0+i,2)}, {vr(r0+i,2)}, {vr(t0+i,2)}')

def main_role(e):
    sX, sWU, sWS = 12, 16, 20
    sW, sTO = 28, 29
    vXR, vD, vXA, vA = 16, 52, 16, 124
    vG, vQ4, vU = 52, 68, 84
    vTm = 100
    e(f'''s_mul_i32 s{sTO}, s2, {TILE}
    v_mul_u32_u24 v3, 288, v1
    v_lshl_add_u32 v3, v2, 4, v3
    v_add_u32 v3, {XT}, v3
    s_mul_i32 s30, s{sW}, {20*1024}
    s_lshl_b32 s31, s{sW}, 11
    s_add_u32 m0, s31, {XT}
    s_add_u32 s31, s31, s{sTO}
    s_waitcnt lgkmcnt(0)''')
    srd(e, sX, 4, B*T*D*2)
    srd(e, sWU, 6, WUP)
    for j in range(3):
        e(f'buffer_load_dwordx4 v8, {sr(sX,4)}, s31 offen offset:{1024*j} lds')
    for j in range(21):
        if j % 4 == 0:
            if j: e(f's_add_u32 s30, s30, 4096')
            e(f's_mov_b32 m0, s30')
            e('s_nop 0')
        e(f'buffer_load_dwordx4 v8, {sr(sWU,4)}, s30 offen offset:{(j%4)*1024} lds')
    srd(e, sWS, 8, WS_USED)
    prefill(e, sWS, 124)
    e(f'''s_mov_b32 s40, {f2u(K1c)}
    v_mov_b32 v4, s40
    v_mov_b32 v5, {f2u(K0)}
    v_mov_b32 v6, 1.0
    v_mov_b32 v7, 1.0
    s_mov_b32 s41, 0x3f803f80
    s_mov_b32 s42, 0x00003f80
    s_mov_b32 s43, 0x3f800000
    s_and_b32 s31, s{sW}, 1
    s_lshl_b32 s32, s31, 3
    v_lshlrev_b32 v9, 2, v2
    v_xor_b32 v9, v9, v1
    v_xor_b32 v9, s32, v9
    v_lshlrev_b32 v9, 4, v9
    v_lshl_add_u32 v9, v2, 9, v9
    v_bfe_u32 v10, v0, 2, 2
    v_lshl_add_u32 v10, v2, 3, v10
    v_mul_u32_u24 v10, 576, v10
    v_bfe_u32 v11, v0, 4, 1
    v_lshl_add_u32 v10, v11, 5, v10
    v_and_b32 v11, 1, v0
    v_lshl_add_u32 v10, v11, 4, v10
    v_bfe_u32 v11, v0, 1, 1
    v_lshl_add_u32 v10, v11, 3, v10
    s_lshr_b32 s33, s{sW}, 1
    s_lshl_b32 s33, s33, 5
    s_add_u32 s33, s33, s32
    s_add_u32 s33, s33, 256
    v_add_u32 v12, s33, v10
    v_add_u32 v13, {112*576}, v12
    s_lshl_b32 s33, s{sW}, 6
    v_add_u32 v10, s33, v10
    v_add_u32 v11, {112*576}, v10
    v_mov_b32 v14, 0
    v_mov_b32 v15, 0''')
    stamp(e, 1)
    e('s_waitcnt vmcnt(24)')
    e('s_barrier')
    stamp(e, 2)
    for j in range(9):
        e(f'ds_read_b128 {vr(vXR+4*j,4)}, v3 offset:{32*j}')
    for j in range(9):
        e(f's_waitcnt lgkmcnt({8-j})')
        for k in range(4):
            e(f'v_dot2_f32_bf16 v{14+(k&1)}, v{vXR+4*j+k}, s41, v{14+(k&1)}')
    e(f'''s_nop 2
    v_add_f32 v14, v14, v15
    v_mov_b32 v15, v14
    s_nop 1
    v_permlane32_swap_b32 v14, v15
    s_nop 1
    v_add_f32 v14, v14, v15
    v_mul_f32 v14, {f2u(-1/144)}, v14''')
    for i in range(36):
        e(f'v_dot2_f32_bf16 v{vD+2*i}, v{vXR+i}, s42, v14')
        e(f'v_dot2_f32_bf16 v{vD+2*i+1}, v{vXR+i}, s43, v14')
    e('s_nop 2')
    e(f'v_pk_mul_f32 v[124:125], {vr(vD,2)}, {vr(vD,2)}')
    e(f'v_pk_mul_f32 v[126:127], {vr(vD+2,2)}, {vr(vD+2,2)}')
    for i in range(2, 36):
        a = 124 + 2*(i & 1)
        e(f'v_pk_fma_f32 {vr(a,2)}, {vr(vD+2*i,2)}, {vr(vD+2*i,2)}, {vr(a,2)}')
    e(f'''v_pk_add_f32 v[124:125], v[124:125], v[126:127]
    s_nop 0
    v_add_f32 v14, v124, v125
    v_mov_b32 v15, v14
    s_nop 1
    v_permlane32_swap_b32 v14, v15
    s_nop 1
    v_add_f32 v14, v14, v15
    v_mov_b32 v15, {f2u(1e-5)}
    v_fmac_f32 v15, {f2u(1/144)}, v14
    v_rsq_f32 v14, v15
    s_nop 0''')
    for i in range(36):
        e(f'v_pk_mul_f32 {vr(vD+2*i,2)}, {vr(vD+2*i,2)}, v[14:15] op_sel_hi:[1,0]')
    for i in range(36):
        e(f'v_cvt_pk_bf16_f32 v{vXA+i}, v{vD+2*i}, v{vD+2*i+1}')
    stamp(e, 3)
    e('s_waitcnt vmcnt(3)')
    e('s_barrier')
    stamp(e, 4)
    def trd(tile, j, ep):
        base = (12 if tile == 1 else 10) + (1 if j >= 7 else 0)
        off = (16*j + 4*ep - (112 if j >= 7 else 0))*576 + (320 if tile == 0 else 0)
        return f'ds_read_b64_tr_b16 {vr(vA+36*tile+4*j+2*ep,2)}, v{base} offset:{off}'
    reads = [trd(t, j, ep) for t in range(3) for j in range(9) for ep in range(2)]
    for x in reads[:14]: e(x)
    e(f's_add_u32 s34, s{sTO}, 4096')
    for w in range(4):
        if w < 3:
            e(f's_cmp_eq_u32 s{sW}, {w}')
            e(f's_cbranch_scc0 L1_st{w+1}')
        e(f'buffer_store_dwordx4 {vr(vXA+4*w,4)}, v9, {sr(sWS,4)}, s{sTO} offen offset:{1024*w}')
        e(f'buffer_store_dwordx4 {vr(vXA+4*w+16,4)}, v9, {sr(sWS,4)}, s34 offen offset:{1024*w}')
        if w == 0:
            e(f's_add_u32 s34, s{sTO}, 8192')
            e(f'buffer_store_dwordx4 {vr(vXA+32,4)}, v9, {sr(sWS,4)}, s34 offen')
        if w < 3:
            e('s_branch L1_std')
            e(f'L1_st{w+1}:')
    e('L1_std:')
    acc = [vG, vQ4, vU]
    nr = 14
    fill = []
    for g in range(4):
        fill += gelu_group([vG+4*g+k for k in range(4)], [vTm+4*g+k for k in range(4)])
    fi = 0
    for m in range(27):
        t, j = divmod(m, 9)
        e(f's_waitcnt lgkmcnt({nr - 2*(m+1)})')
        e(f'{MF} {vr(acc[t],16)}, {vr(vA+36*t+4*j,4)}, {vr(vXA+4*j,4)}, {"0" if j == 0 else vr(acc[t],16)}')
        for _ in range(2):
            if nr < 54:
                e(reads[nr]); nr += 1
        if m >= 11:
            n = 7
            for x in fill[fi:fi+n]: e(x)
            fi += n
    for x in fill[fi:]: e(x)
    for x in gelu_group([vQ4+k for k in range(4)], [vTm+k for k in range(4)]): e(x)
    stamp(e, 5)
    e(f'''s_cmp_ge_u32 s{sW}, 2
    s_cselect_b32 s35, 1.0, 0
    v_pk_add_f32 v[100:101], {vr(vQ4,2)}, {vr(vQ4+2,2)}
    v_pk_mul_f32 v[102:103], {vr(vQ4,2)}, {vr(vQ4,2)}
    v_pk_fma_f32 v[102:103], {vr(vQ4+2,2)}, {vr(vQ4+2,2)}, v[102:103]
    v_mul_f32 v100, s35, v100
    v_mul_f32 v101, s35, v101
    v_mul_f32 v102, s35, v102
    v_mul_f32 v103, s35, v103''')
    for i in range(0, 16, 2):
        e(f'v_pk_add_f32 v[100:101], v[100:101], {vr(vG+i,2)}')
        e(f'v_pk_fma_f32 v[102:103], {vr(vG+i,2)}, {vr(vG+i,2)}, v[102:103]')
    e(f'''v_lshlrev_b32 v14, 6, v1
    v_add_u32 v14, {STAT}, v14
    s_lshl_b32 s36, s{sW}, 4
    v_lshl_add_u32 v15, v2, 3, s36
    v_add_u32 v15, v15, v14
    v_add_f32 v100, v100, v101
    v_add_f32 v101, v102, v103
    ds_write_b64 v15, v[100:101]''')
    gelu_packed(e, vU, 16, 104)
    e(f'''s_lshl_b32 s36, s{sW}, 11
    s_add_u32 s36, s36, s{sTO}
    s_add_u32 s36, s36, {U_OFF}''')
    for k in range(8):
        e(f'v_cvt_pk_bf16_f32 v{vU+k}, v{vU+2*k}, v{vU+2*k+1}')
    e('s_waitcnt lgkmcnt(0)')
    e('s_barrier')
    for k in range(4):
        e(f'ds_read_b128 {vr(104+4*k,4)}, v14 offset:{16*k}')
    e(f'buffer_store_dwordx4 {vr(vU,4)}, v8, {sr(sWS,4)}, s36 offen')
    e(f'buffer_store_dwordx4 {vr(vU+4,4)}, v8, {sr(sWS,4)}, s36 offen offset:1024')
    e(f'''s_add_u32 s38, s36, {G_OFF - U_OFF + 1024}
    s_add_u32 s37, s{sTO}, {G_OFF}
    s_waitcnt lgkmcnt(0)''')
    for st in (2, 4, 8):
        for k in range(0, 16, 2*st):
            e(f'v_pk_add_f32 {vr(104+k,2)}, {vr(104+k,2)}, {vr(104+k+st,2)}')
    e(f'''s_nop 0
    v_mul_f32 v104, {f2u(1/144)}, v104
    v_mul_f32 v106, v104, v104
    v_fma_f32 v105, v105, s44, -v106
    v_max_f32 v105, 0, v105
    v_add_f32 v105, {f2u(1e-5)}, v105
    v_rsq_f32 v106, v105
    s_nop 0
    v_mul_f32 v107, v104, v106''')
    for i in range(0, 16, 2):
        e(f'v_pk_fma_f32 {vr(vG+i,2)}, {vr(vG+i,2)}, v[106:107], v[106:107] op_sel:[0,0,1] op_sel_hi:[1,0,1] neg_lo:[0,0,1] neg_hi:[0,0,1]')
    e('s_nop 0')
    for k in range(8):
        e(f'v_cvt_pk_f16_f32 v{vG+k}, v{vG+2*k}, v{vG+2*k+1}')
    e(f'buffer_store_dwordx4 {vr(vG,4)}, v8, {sr(sWS,4)}, s38 offen')
    e(f'buffer_store_dwordx4 {vr(vG+4,4)}, v8, {sr(sWS,4)}, s38 offen offset:1024')
    e(f'''s_cmp_ge_u32 s{sW}, 2
    s_cbranch_scc1 L1_qg
    v_cvt_pk_bf16_f32 v{vQ4}, v{vQ4}, v{vQ4+1}
    v_cvt_pk_bf16_f32 v{vQ4+1}, v{vQ4+2}, v{vQ4+3}
    s_add_u32 s36, s{sTO}, {U_OFF+8192}
    s_add_u32 s36, s36, s32
    buffer_store_dwordx2 {vr(vQ4,2)}, v8, {sr(sWS,4)}, s36 offen''')
    stamp(e, 6)
    if TS: e('s_waitcnt vmcnt(0)')
    stamp_flush(e, 0, sWS, sW, 7)
    e('''s_endpgm
    L1_qg:''')
    for i in range(0, 4, 2):
        e(f'v_pk_fma_f32 {vr(vQ4+i,2)}, {vr(vQ4+i,2)}, v[106:107], v[106:107] op_sel:[0,0,1] op_sel_hi:[1,0,1] neg_lo:[0,0,1] neg_hi:[0,0,1]')
    e(f'''s_add_u32 s37, s37, s32
    v_cvt_pk_f16_f32 v{vQ4}, v{vQ4}, v{vQ4+1}
    v_cvt_pk_f16_f32 v{vQ4+1}, v{vQ4+2}, v{vQ4+3}
    buffer_store_dwordx2 {vr(vQ4,2)}, v8, {sr(sWS,4)}, s37 offen''')
    stamp(e, 6)
    if TS: e('s_waitcnt vmcnt(0)')
    stamp_flush(e, 0, sWS, sW, 7)
    e('s_endpgm')

def prefill(e, sWS, v):
    e(f's_mul_i32 s39, s2, 12288')
    e(f's_mul_i32 s38, s28, 3072')
    e(f's_add_u32 s39, s39, s38')
    e(f's_add_u32 s39, s39, {EX_OFF}')
    for k in range(4): e(f'v_mov_b32 v{v+k}, -1')
    for k in range(3):
        e(f'buffer_store_dwordx4 {vr(v,4)}, v8, {sr(sWS,4)}, s39 offen offset:{1024*k} sc1')

def weight_role(e):
    sW = 28
    sM, sK, sWS = 12, 16, 24
    vB, vB2, vAcc, vA = 16, 56, 96, 128
    e(f'''L1_wt:
    s_load_dwordx4 s[44:47], s[0:1], 8
    s_load_dwordx4 s[48:51], s[0:1], 24
    s_load_dwordx4 s[52:55], s[0:1], 56
    s_sub_u32 s29, s2, 250
    s_cmp_ge_u32 s29, 3
    s_cselect_b32 s33, 1, 0
    s_cselect_b32 s30, 3, 0
    s_sub_u32 s29, s29, s30
    s_lshl_b32 s29, s29, 2
    s_add_u32 s29, s29, s{sW}
    s_and_b32 s31, s29, 1
    s_lshr_b32 s29, s29, 1
    v_and_b32 v3, 0x13, v1
    v_bfe_u32 v4, v1, 2, 1
    v_lshl_add_u32 v3, v4, 3, v3
    v_bfe_u32 v4, v1, 3, 1
    v_lshl_add_u32 v3, v4, 2, v3
    v_mul_u32_u24 v3, 288, v3
    v_lshl_add_u32 v3, v2, 4, v3
    v_mul_u32_u24 v4, 288, v1
    v_lshl_add_u32 v4, v2, 4, v4
    s_mul_i32 s34, s{sW}, {10*1024}
    s_waitcnt lgkmcnt(0)''')
    srd(e, sK, 46, 144*288)
    e(f's_mul_i32 s30, s29, {32*288}')
    e(f'''s_cmp_gt_u32 s33, s31
    s_cbranch_scc0 L1_w_nok''')
    for j in range(9):
        e(f'buffer_load_dwordx4 {vr(vB+4*j,4)}, v3, {sr(sK,4)}, s30 offen offset:{32*j}')
    e('L1_w_nok:')
    for mi in range(3):
        e('s_cmp_eq_u32 s33, 0')
        if mi == 0:
            e(f's_cselect_b32 s35, 0, {144*288}')
            e(f's_add_u32 s4, s54, s35'); e('s_addc_u32 s5, s55, 0')
        else:
            p, q = ((50, 44), (48, 52))[mi-1]
            e(f's_cselect_b32 s4, s{p}, s{q}'); e(f's_cselect_b32 s5, s{p+1}, s{q+1}')
        sm = (12, 56, 60)[mi]
        srd(e, sm, 4, 144*288)
        for j in range(11):
            if j % 4 == 0:
                e(f's_add_u32 s35, s34, {j*1024}')
                e(f's_add_u32 m0, s35, {mi*MS}')
                e('s_nop 0')
            e(f'buffer_load_dwordx4 v8, {sr(sm,4)}, s35 offen offset:{(j%4)*1024} lds')
    srd(e, sWS, 8, WS_USED)
    prefill(e, sWS, 200)
    e(f'''v_bfe_u32 v10, v0, 2, 2
    v_lshl_add_u32 v10, v2, 3, v10
    v_mul_u32_u24 v10, 288, v10
    v_bfe_u32 v11, v0, 4, 1
    v_lshl_add_u32 v10, v11, 5, v10
    v_and_b32 v11, 1, v0
    v_lshl_add_u32 v10, v11, 4, v10
    v_bfe_u32 v11, v0, 1, 1
    v_lshl_add_u32 v10, v11, 3, v10
    s_lshl_b32 s35, s29, 6
    v_add_u32 v10, s35, v10
    s_and_b32 s35, s33, s31
    s_add_u32 s35, s35, 1
    s_mul_i32 s35, s35, {MS}
    v_add_u32 v3, s35, v3
    s_mul_i32 s35, s31, {64*288}
    s_add_u32 s35, s35, {2*MS}
    v_add_u32 v4, s35, v4
    s_mov_b32 s40, 1.0
    s_cmp_gt_u32 s33, s31
    s_cselect_b32 s40, {f2u(144**-0.5*math.log2(math.e))}, s40
    s_waitcnt vmcnt(14)
    s_cmp_eq_u32 s33, 0
    s_cbranch_scc1 L1_w_b1
    s_waitcnt vmcnt(3)
    L1_w_b1:
    s_barrier''')
    stamp(e, 1)
    e(f'''s_cmp_ge_u32 s29, 5
    s_cbranch_scc1 L1_w_idle
    s_cmp_gt_u32 s33, s31
    s_cbranch_scc1 L1_w_g1''')
    for j in range(9):
        for ep in range(2):
            e(f'ds_read_b64_tr_b16 {vr(vB+4*j+2*ep,2)}, v10 offset:{(16*j+4*ep)*288}')
    e('L1_w_g1:')
    def gemm(n, addr, b, out, scale):
        for j in range(9):
            e(f'ds_read_b128 {vr(vA+4*j,4)}, v{addr} offset:{32*j}')
        for dt in range(n+1):
            a = vAcc + 16*(dt & 1)
            if dt < n:
                e('s_waitcnt lgkmcnt(0)')
                for j in range(9):
                    e(f'{MF} {vr(a,16)}, {vr(vA+36*(dt&1)+4*j,4)}, {vr(b+4*j,4)}, {"0" if j == 0 else vr(a,16)}')
                    if dt+1 < n:
                        e(f'ds_read_b128 {vr(vA+36*((dt+1)&1)+4*j,4)}, v{addr} offset:{(dt+1)*32*288 + 32*j}')
            else:
                e('s_nop 7'); e('s_nop 7')
            if dt:
                p = vAcc + 16*((dt-1) & 1)
                if scale:
                    for k in range(16 if dt < n else 8):
                        e(f'v_mul_f32 v{p+k}, s40, v{p+k}')
                for k in range(8 if dt < n else 4):
                    e(f'v_cvt_pk_bf16_f32 v{out+8*(dt-1)+k}, v{p+2*k}, v{p+2*k+1}')
    gemm(5, 3, vB, vB2, True)
    stamp(e, 2)
    e(f'''s_cmp_eq_u32 s33, 0
    s_cbranch_scc1 L1_w_g2
    s_mul_i32 s30, s29, {9*1024}
    s_add_u32 s30, s30, {WQ_OFF}
    s_mul_i32 s32, s29, {18*1024}
    s_add_u32 s32, s32, {WF_OFF + 9*1024}
    s_cmp_eq_u32 s31, 0
    s_cselect_b32 s30, s30, s32''')
    for j in range(9):
        if j % 4 == 0 and j: e('s_add_u32 s30, s30, 4096')
        e(f'buffer_store_dwordx4 {vr(vB2+4*j,4)}, v8, {sr(sWS,4)}, s30 offen offset:{(j%4)*1024}')
    if TS: e('s_waitcnt vmcnt(0)')
    stamp_flush(e, 0, sWS, sW, 7)
    e('s_endpgm')
    e(f'''L1_w_idle:
    s_cmp_eq_u32 s33, 0
    s_cbranch_scc0 L1_exit
    s_waitcnt vmcnt(3)
    s_barrier
    s_endpgm
    L1_w_g2:
    s_mul_i32 s30, s29, {18*1024}
    s_lshl_b32 s32, s31, 12
    s_add_u32 s30, s30, s32
    s_add_u32 s30, s30, {WF_OFF}
    s_add_u32 s32, s30, 4096
    s_waitcnt vmcnt(3)
    s_barrier''')
    gemm(3, 4, vB2, vB, False)
    for j in range(5):
        e(f'buffer_store_dwordx4 {vr(vB+4*j,4)}, v8, {sr(sWS,4)}, s{30 if j < 4 else 32} offen offset:{(j%4)*1024}')
    if TS: e('s_waitcnt vmcnt(0)')
    stamp_flush(e, 0, sWS, sW, 7)
    e('s_endpgm')

def gen_k1(name):
    e = Emit()
    e(f'''s_cmp_ge_u32 s2, 256
    s_cbranch_scc1 L1_exit
    s_load_dwordx2 s[4:5], s[0:1], 0
    s_load_dwordx2 s[6:7], s[0:1], 40
    s_load_dwordx2 s[8:9], s[0:1], 88
    v_lshrrev_b32 v1, 6, v0
    v_and_b32 v0, 63, v0
    v_readfirstlane_b32 s28, v1
    v_and_b32 v1, 31, v0
    v_lshrrev_b32 v2, 5, v0
    v_lshlrev_b32 v8, 4, v0
    s_mov_b32 s44, {f2u(1/144)}''')
    if TS: e('s_memrealtime s[70:71]')
    e(f'''s_cmp_ge_u32 s2, 250
    s_cbranch_scc1 L1_wt''')
    main_role(e)
    weight_role(e)
    e('L1_exit:')
    e('s_endpgm')
    return khead(name) + e.text()
```
